```python
import torch

def _softmax(x, axis=-1):
    return torch.softmax(x, dim=axis)
def _gelu(x):
    return torch.nn.functional.gelu(x, approximate="tanh")
def _silu(x):
    return torch.nn.functional.silu(x)
def _sigmoid(x):
    return torch.sigmoid(x)
def _layernorm(x, axis=-1, eps=1e-5):
    m = x.mean(dim=axis, keepdim=True)
    v = x.var(dim=axis, keepdim=True, unbiased=False)
    return (x - m) / torch.sqrt(v + eps)
def _scatter_add(tgt, idx, src, axis=0):
    return tgt.clone().index_add_(axis, idx, src)
def _segment_sum(src, seg, n):
    out = torch.zeros((n,) + src.shape[1:], dtype=src.dtype)
    return out.index_add_(0, seg, src)
def _pad(x, pw):
    flat = tuple(v for pair in reversed(pw) for v in pair)
    return torch.nn.functional.pad(x, flat)

kernel_name = 'sequential_preLN__mha_block_cached__glu_gated_glu__decode'

def setup_inputs():

    _w = (lambda a: (lambda t: t.to(torch.bfloat16) if t.is_floating_point() else t)(torch.as_tensor(a)))
    def _A_setup():
        B, Sq, D = 1, 1, 512
        H, Sk, Dh = 32, 4096, 128
        return {
            "x": _w((lambda *s: torch.randn(*s, dtype=torch.bfloat16) * 0.1)(B, Sq, D)),
            "k_cache": _w((lambda *s: torch.randn(*s, dtype=torch.bfloat16) * 0.8)(B, H, Sk, Dh)),
            "v_cache": _w((lambda *s: torch.randn(*s, dtype=torch.bfloat16) * 1.6)(B, H, Sk, Dh)),
            "wq": _w((lambda *s: torch.randn(*s, dtype=torch.bfloat16) * 0.8)(D, H * Dh) * (D ** -0.5)),
            "wo": _w((lambda *s: torch.randn(*s, dtype=torch.bfloat16) * 1.6)(H * Dh, D) * ((H * Dh) ** -0.5)),
        }
    _A_in = _A_setup()

    def _B_setup():
        B, S, D, F = 1, 1, 512, 1376
        return {
            "x": _w((lambda *s: torch.randn(*s, dtype=torch.bfloat16) * 0.1)(B, S, D)),
            "w_gate": _w((lambda *s: torch.randn(*s, dtype=torch.bfloat16) * 3.2)(D, F)),
            "w_up": _w((lambda *s: torch.randn(*s, dtype=torch.bfloat16) * 0.2)(D, F)),
            "w_down": _w((lambda *s: torch.randn(*s, dtype=torch.bfloat16) * 0.2)(F, D)),
        }
    _B_in = _B_setup()

    return {
        "A_x": _A_in["x"],
        "A_k_cache": _A_in["k_cache"],
        "A_v_cache": _A_in["v_cache"],
        "A_wq": _A_in["wq"],
        "A_wo": _A_in["wo"],
        "B_x": _B_in["x"],
        "B_w_gate": _B_in["w_gate"],
        "B_w_up": _B_in["w_up"],
        "B_w_down": _B_in["w_down"],
    }

def reference(A_x, A_k_cache, A_v_cache, A_wq, A_wo, B_x, B_w_gate, B_w_up, B_w_down):
    def _A_ref(x, k_cache, v_cache, wq, wo):
        B, Sq, D = x.shape
        H, Dh = 32, 128
        q = (lambda x, *d: x.permute(*d))((x @ wq).reshape(B, Sq, H, Dh), 0, 2, 1, 3)
        scores = torch.einsum("bhqd,bhkd->bhqk", q, k_cache) * (Dh ** -0.5)
        p = _softmax(scores, axis=-1)
        o = torch.einsum("bhqk,bhkd->bhqd", p, v_cache)
        return (lambda x, *d: x.permute(*d))(o, 0, 2, 1, 3).reshape(B, Sq, H * Dh) @ wo

    def _B_ref(x, w_gate, w_up, w_down):
        g = torch.einsum("bsd,df->bsf", x, w_gate)
        u = torch.einsum("bsd,df->bsf", x, w_up)
        h = _sigmoid(g) * u
        return torch.einsum("bsf,fd->bsd", h, w_down)

    x = A_x
    h = x + _A_ref(_layernorm(x, axis=-1), A_k_cache, A_v_cache, A_wq, A_wo)
    h2 = h + _B_ref(_layernorm(h, axis=-1), B_w_gate, B_w_up, B_w_down)
    return h2
```

```python
NAME = "sequential_preLN__mha_block_cached__glu_gated_glu__decode"
HDR = """; Kernarg layout (96 bytes, ptrs only, base s[0:1]):
"""
class Asm:
    def __init__(self):
        self.lines = []
    def __call__(self, s=""):
        for l in s.split("\n"):
            self.lines.append(l)
    def text(self):
        return "\n".join(self.lines) + "\n"

def wrap(body, grid, block, lds, vgpr, sgpr=96, accum=None, name=None):
    name = name or NAME + "_kernel"
    if accum is None:
        accum = min(256, (vgpr + 3) // 4 * 4)
    return (HDR + f"; @launch grid=({grid},1,1) block=({block},1,1) lds={lds}\n"
        + '.amdgcn_target "amdgcn-amd-amdhsa--gfx950"\n.text\n'
        + f".globl {name}\n.p2align 8\n.type {name},@function\n{name}:\n"
        + body
        + '.section .rodata,"a"\n.p2align 6\n'
        + f".amdhsa_kernel {name}\n  .amdhsa_next_free_vgpr {vgpr}\n  .amdhsa_next_free_sgpr {sgpr}\n  .amdhsa_accum_offset {accum}\n"
        + "  .amdhsa_group_segment_fixed_size 0\n  .amdhsa_kernarg_size 96\n  .amdhsa_user_sgpr_count 2\n"
        + "  .amdhsa_user_sgpr_kernarg_segment_ptr 1\n  .amdhsa_system_sgpr_workgroup_id_x 1\n.end_amdhsa_kernel\n")
```

```python
import sys
from gen import *

QP, ML, OP, YP, HH = 0x00000, 0x20000, 0x30000, 0x40000, 0x44000
STAMP = 0x100000
P_LDS, F_LDS, CNT, Q_LDS, ORED, WRED, HL, GRED, STAT, HHL, DRED = 0x0, 0x800, 0x810, 0x900, 0xD00, 0x1500, 0x1700, 0x1B00, 0x1D00, 0x1E00, 0x2900
WW, GW, LDS_SIZE = 0x3000, 0x7000, 0x12000
sK, sV, sWQ, sX, sWO, sWG, sWU, sWD, sOUT, sDBG, sWS = [f"s[{i}:{i+3}]" for i in range(4, 48, 4)]
LOG2E = 1.4426950408889634
import struct
def f2u(x): return "0x%08x" % struct.unpack("<I", struct.pack("<f", x))[0]

def make(nt="nt", wnt="nt", stamps=False, spin=200000, sleep=0):
    a = Asm()
    nst = [0]
    def stamp(k):
        if stamps: a(f"s_memrealtime s[{64+2*k}:{65+2*k}]")
    def srd(base, lo, size):
        a(f"s_mov_b64 s[{base}:{base+1}], s[{lo}:{lo+1}]")
    def allreduce(op, v, sdst, n32=False):
        for r in (8, 4, 2, 1):
            a(f"s_nop 1\n{op}_dpp {v}, {v}, {v} row_ror:{r} row_mask:0xf bank_mask:0xf")
        a(f"s_nop 1\n{op}_dpp {v}, {v}, {v} row_bcast:15 row_mask:0xa bank_mask:0xf")
        if not n32:
            a(f"s_nop 1\n{op}_dpp {v}, {v}, {v} row_bcast:31 row_mask:0xc bank_mask:0xf")
        a(f"s_nop 0\nv_readlane_b32 {sdst}, {v}, {31 if n32 else 63}")
    def rne(dst, src):
        a(f"v_cvt_pk_bf16_f32 {dst}, {src}, {src}\nv_and_b32 {dst}, 0xffff0000, {dst}")
    lbl = [0]
    def poll(loads, regs, tmp):
        lbl[0] += 1; L = f"L_poll{lbl[0]}"
        a(f"s_mov_b32 s62, 0\n{L}:")
        for l in loads: a(l)
        a(f"s_add_u32 s62, s62, 1\ns_cmp_gt_u32 s62, {spin}\ns_cbranch_scc1 {L}_done")
        a("s_waitcnt vmcnt(0)")
        r = list(regs)
        if len(r) == 1:
            a(f"v_cmp_eq_u32 vcc, -1, {r[0]}")
        else:
            if len(r) == 2:
                a(f"v_max_u32 {tmp}, {r[0]}, {r[1]}"); r = []
            else:
                a(f"v_max3_u32 {tmp}, {r[0]}, {r[1]}, {r[2]}"); r = r[3:]
            while len(r) >= 2:
                a(f"v_max3_u32 {tmp}, {tmp}, {r[0]}, {r[1]}"); r = r[2:]
            if r: a(f"v_max_u32 {tmp}, {tmp}, {r[0]}")
            a(f"v_cmp_eq_u32 vcc, -1, {tmp}")
        if sleep:
            a(f"s_cbranch_vccz {L}_done\ns_sleep {sleep}\ns_branch {L}")
        else:
            a(f"s_cbranch_vccnz {L}")
        a(f"{L}_done:\ns_waitcnt vmcnt(0)")
    def vr(b, n=4): return f"v[{b}:{b+n-1}]"

    if stamps: a("s_memrealtime s[96:97]")
    a(f"""
    s_cmp_ge_u32 s2, 256
    s_cbranch_scc1 L_end
    s_load_dwordx2 s[4:5], s[0:1], 8
    s_load_dwordx16 s[64:79], s[0:1], 0
    s_load_dwordx8 s[80:87], s[0:1], 64
    v_lshrrev_b32 v1, 6, v0
    v_and_b32 v0, 63, v0
    v_readfirstlane_b32 s3, v1
    v_lshlrev_b32 v2, 4, v0
    s_and_b32 s48, s2, 7
    s_lshr_b32 s49, s2, 3         ; j
    s_lshr_b32 s50, s49, 3
    s_lshl_b32 s51, s48, 2
    s_add_u32 s50, s50, s51       ; h
    s_and_b32 s51, s49, 7         ; s
    s_lshl_b32 s52, s50, 3
    s_add_u32 s52, s52, s51       ; rec = h*8+s
    s_and_b32 s53, s3, 3          ; w
    s_lshl_b32 s54, s52, 17
    s_lshl_b32 s55, s53, 10
    s_add_u32 s54, s54, s55
    s_mov_b32 s6, 0x2000000
    s_mov_b32 s7, 0x20000
    s_mov_b32 s10, 0x2000000
    s_mov_b32 s11, 0x20000
    s_mov_b32 s14, 0x400000
    s_mov_b32 s15, 0x20000
    s_mov_b32 s18, 1024
    s_mov_b32 s19, 0x20000
    s_mov_b32 s22, 0x400000
    s_mov_b32 s23, 0x20000
    s_mov_b32 s26, {512*2752}
    s_mov_b32 s27, 0x20000
    s_mov_b32 s30, {512*2752}
    s_mov_b32 s31, 0x20000
    s_mov_b32 s34, {1376*1024}
    s_mov_b32 s35, 0x20000
    s_mov_b32 s38, 1024
    s_mov_b32 s39, 0x20000
    s_mov_b32 s42, 256
    s_mov_b32 s43, 0x20000
    s_mov_b32 s46, 0x10000000
    s_mov_b32 s47, 0x20000
    v_lshrrev_b32 v3, 4, v0       ; g
    v_and_b32 v4, 15, v0          ; n / m
    s_waitcnt lgkmcnt(0)
    s_mov_b64 s[8:9], s[68:69]
    s_mov_b64 s[12:13], s[70:71]
    s_mov_b64 s[16:17], s[64:65]
    s_mov_b64 s[20:21], s[72:73]
    s_mov_b64 s[24:25], s[76:77]
    s_mov_b64 s[28:29], s[78:79]
    s_mov_b64 s[32:33], s[80:81]
    s_mov_b64 s[36:37], s[82:83]
    s_mov_b64 s[40:41], s[84:85]
    s_mov_b64 s[44:45], s[86:87]
    s_cmp_ge_u32 s3, 4
    s_cbranch_scc1 L_vwave
    """)
    KR = 128
    for i in range(32):
        a(f"buffer_load_dwordx4 {vr(KR+4*i)}, v2, {sK}, s54 offen {nt}")
        if i != 31: a("s_add_u32 s54, s54, 4096")
    stamp(0)
    a("s_barrier")
    a(f"""
    v_lshlrev_b32 v5, 2, v0
    s_mov_b32 s62, 0
L_flags:
    buffer_load_dword v6, v5, {sDBG}, 0 offen sc1
    s_add_u32 s62, s62, 1
    s_cmp_gt_u32 s62, {spin}
    s_cbranch_scc1 L_flags_done
    s_waitcnt vmcnt(0)
    v_cmp_ne_u32 vcc, 0x01010101, v6
    s_cbranch_vccnz L_flags
L_flags_done:
    """)
    stamp(1)
    a(f"v_lshlrev_b32 v5, 3, v0\ns_lshl_b32 s55, s50, 12\ns_add_u32 s55, s55, {QP}")
    poll([f"buffer_load_dwordx2 {vr(8+2*k,2)}, v5, {sWS}, s55 offen offset:{512*k} sc1" for k in range(8)],
         [f"v{8+k}" for k in range(16)], "v7")
    stamp(2)
    for k in range(4): a(f"v_pk_add_f32 {vr(8+4*k,2)}, {vr(8+4*k,2)}, {vr(10+4*k,2)}")
    a(f"v_pk_add_f32 v[8:9], v[8:9], v[12:13]\nv_pk_add_f32 v[16:17], v[16:17], v[20:21]\nv_pk_add_f32 v[8:9], v[8:9], v[16:17]")
    a(f"""
    v_cvt_pk_bf16_f32 v8, v8, v9
    s_lshl_b32 s55, s53, 8
    s_add_u32 s55, s55, {Q_LDS}
    v_lshl_add_u32 v5, v0, 2, s55
    ds_write_b32 v5, v8
    v_lshl_add_u32 v5, v4, 4, s55
    s_waitcnt lgkmcnt(0)
    ds_read_b128 v[8:11], v5
    s_mov_b32 s56, 0xaaaaaaaa
    s_mov_b32 s57, 0xaaaaaaaa
    s_mov_b32 s58, 0xcccccccc
    s_mov_b32 s59, 0xcccccccc
    s_waitcnt lgkmcnt(0)
    """)
    for i0 in range(0, 32, 4):
        for r in range(4):
            for i in range(i0, i0 + 4):
                b = KR + 4 * i
                a(f"v_dot2_f32_bf16 v{b}, v{b+r}, v{8+r}, {'0' if r == 0 else 'v%d' % b}")
    a("s_nop 2")
    S = lambda i: f"v{KR+4*i}"
    for half in (0, 16):
        for i in range(8):
            a(f"v_add_f32_dpp {S(half+i)}, {S(half+i)}, {S(half+i)} row_ror:8 row_mask:0xf bank_mask:0x3")
            a(f"v_add_f32_dpp {S(half+i)}, {S(half+i+8)}, {S(half+i+8)} row_ror:8 row_mask:0xf bank_mask:0xc")
    for half in (0, 16):
        for i in range(4):
            a(f"v_add_f32_dpp {S(half+i)}, {S(half+i)}, {S(half+i)} row_half_mirror row_mask:0xf bank_mask:0x5")
            a(f"v_add_f32_dpp {S(half+i)}, {S(half+i+4)}, {S(half+i+4)} row_half_mirror row_mask:0xf bank_mask:0xa")
    t = 12
    for half in (0, 16):
        for pr in (0, 2):
            a(f"v_cndmask_b32 v{t}, {S(half+pr)}, {S(half+pr+1)}, s[56:57]")
            a(f"v_cndmask_b32 v{t+1}, {S(half+pr+1)}, {S(half+pr)}, s[56:57]")
            t += 2
    a("s_nop 0")
    for t in (12, 14, 16, 18):
        a(f"v_add_f32_dpp v{t}, v{t+1}, v{t} quad_perm:[1,0,3,2] row_mask:0xf bank_mask:0xf")
    a("""
    v_cndmask_b32 v13, v12, v14, s[58:59]
    v_cndmask_b32 v15, v14, v12, s[58:59]
    v_cndmask_b32 v17, v16, v18, s[58:59]
    v_cndmask_b32 v19, v18, v16, s[58:59]
    s_nop 0
    v_add_f32_dpp v12, v15, v13 quad_perm:[2,3,0,1] row_mask:0xf bank_mask:0xf
    v_add_f32_dpp v13, v19, v17 quad_perm:[2,3,0,1] row_mask:0xf bank_mask:0xf
    """)
    a(f"""
    v_mul_f32 v12, {f2u(LOG2E * 128 ** -0.5)}, v12
    v_mul_f32 v13, {f2u(LOG2E * 128 ** -0.5)}, v13
    v_max_f32 v14, v12, v13
    """)
    allreduce("v_max_f32", "v14", "s60")
    a(f"""
    s_nop 1
    v_subrev_f32 v12, s60, v12
    v_subrev_f32 v13, s60, v13
    v_exp_f32 v12, v12
    v_exp_f32 v13, v13
    s_nop 0
    v_add_f32 v14, v12, v13
    v_cvt_pk_bf16_f32 v12, v12, v12
    v_cvt_pk_bf16_f32 v13, v13, v13
    s_lshl_b32 s55, s53, 9
    v_lshlrev_b32 v5, 7, v3
    v_lshl_add_u32 v5, v4, 2, v5
    v_add_u32 v5, s55, v5
    ds_write_b32 v5, v12 offset:{P_LDS}
    ds_write_b32 v5, v13 offset:{P_LDS+64}
    """)
    allreduce("v_add_f32", "v14", "s61")
    a(f"""
    s_lshl_b32 s55, s52, 2
    s_add_u32 s55, s55, s53
    s_lshl_b32 s55, s55, 3
    s_add_u32 s55, s55, {ML}
    v_mov_b32 v12, s60
    v_mov_b32 v13, s61
    v_min_u32 v12, -2, v12
    v_min_u32 v13, -2, v13
    v_mov_b32 v5, 0
    s_mov_b64 exec, 1
    buffer_store_dwordx2 v[12:13], v5, {sWS}, s55 offen sc1
    s_mov_b64 exec, -1
    v_and_b32 v5, 31, v0
    v_lshlrev_b32 v5, 3, v5
    s_lshl_b32 s55, s50, 8
    s_add_u32 s55, s55, {ML}
    """)
    stamp(3)
    poll([f"buffer_load_dwordx2 v[12:13], v5, {sWS}, s55 offen sc1"], ["v12", "v13"], "v7")
    stamp(4)
    a("v_mov_b32 v14, v12")
    allreduce("v_max_f32", "v14", "s63", n32=True)
    a("""
    s_nop 1
    v_subrev_f32 v12, s63, v12
    v_exp_f32 v12, v12
    s_nop 0
    v_mul_f32 v14, v12, v13
    """)
    allreduce("v_add_f32", "v14", "s61", n32=True)
    a(f"""
    v_mov_b32 v12, s60
    v_subrev_f32 v12, s63, v12
    v_exp_f32 v12, v12
    v_rcp_f32 v13, s61
    s_nop 0
    v_mul_f32 v12, v12, v13
    s_lshl_b32 s55, s53, 2
    v_mov_b32 v5, s55
    ds_write_b32 v5, v12 offset:{F_LDS}
    v_lshrrev_b32 v5, 1, v0
    v_lshlrev_b32 v5, 10, v5
    v_and_b32 v6, 1, v0
    v_lshl_add_u32 v5, v6, 4, v5          ; (l>>1)*1024 + (l&1)*16
    s_lshl_b32 s55, s48, 2
    s_add_u32 s55, s55, s53
    s_lshl_b32 s56, s55, 17
    s_lshl_b32 s57, s49, 5
    s_add_u32 s56, s56, s57
    s_lshl_b32 s57, s53, 12
    s_add_u32 s57, s57, {WW}
    s_mov_b32 m0, s57
    s_waitcnt lgkmcnt(0)
    """)
    stamp(5)
    a("s_barrier")
    for i in range(4):
        a(f"buffer_load_dwordx4 v5, {sWO}, s56 offen {wnt} lds")
        if i != 3: a("s_add_u32 s56, s56, 32768\ns_add_u32 m0, m0, 1024\ns_nop 0")
    a(f"""
    v_lshrrev_b32 v6, 2, v4
    v_lshl_add_u32 v6, v3, 3, v6
    v_lshlrev_b32 v6, 5, v6
    v_and_b32 v7, 3, v0
    v_lshl_add_u32 v6, v7, 3, v6
    v_add_u32 v6, s57, v6
    v_lshlrev_b32 v5, 8, v4
    v_lshl_add_u32 v5, v3, 4, v5
    s_lshl_b32 s55, s55, 11
    s_add_u32 s55, s55, {OP}
    """)
    for k in range(16): a(f"v_mov_b32 v{40+k}, 0")
    a("s_waitcnt vmcnt(0)")
    for ks in range(4):
        a(f"ds_read_b64_tr_b16 {vr(24+4*ks,2)}, v6 offset:{ks*1024}")
        a(f"ds_read_b64_tr_b16 {vr(26+4*ks,2)}, v6 offset:{ks*1024+128}")
    a(f"""
    v_lshlrev_b32 v8, 5, v4
    v_lshl_add_u32 v8, v3, 2, v8
    s_lshl_b32 s56, s53, 3
    v_add_u32 v8, s56, v8
    v_mov_b32 v9, 0
    v_mov_b32 v10, 1
    v_lshlrev_b32 v11, 6, v0
    v_lshlrev_b32 v12, 2, v0
    s_lshl_b32 s56, s48, 10
    s_lshl_b32 s57, s49, 5
    s_add_u32 s56, s56, s57
    s_add_u32 s56, s56, {YP}
    s_waitcnt lgkmcnt(0)
    s_mov_b32 exec_lo, 0x00ff00ff
    s_mov_b32 exec_hi, 0x00ff00ff
    """)
    stamp(6)
    poll([f"buffer_load_dwordx4 {vr(40+4*ks)}, v5, {sWS}, s55 offen offset:{64*ks} sc1" for ks in range(4)],
         [f"v{40+k}" for k in range(16)], "v7")
    stamp(7)
    a("s_mov_b64 exec, -1")
    for ks in range(4):
        a(f"v_mfma_f32_16x16x32_bf16 v[16:19], {vr(40+4*ks)}, {vr(24+4*ks)}, {'0' if ks == 0 else 'v[16:19]'}")
    a(f"""
    s_mov_b32 exec_hi, 0
    s_nop 6
    v_add_f32 v16, v16, v17
    v_add_f32 v18, v18, v19
    v_add_f32 v16, v16, v18
    ds_write_b32 v8, v16 offset:{WRED}
    s_mov_b64 exec, 1
    ds_add_rtn_u32 v13, v9, v10 offset:{CNT+4}
    s_waitcnt lgkmcnt(0)
    v_readfirstlane_b32 s57, v13
    s_nop 3
    s_cmp_lt_u32 s57, 3
    s_cbranch_scc1 L_kdone
    s_mov_b32 exec_lo, 0xff
    ds_read_b128 v[16:19], v11 offset:{WRED}
    ds_read_b128 v[20:23], v11 offset:{WRED+16}
    ds_read_b128 v[24:27], v11 offset:{WRED+32}
    ds_read_b128 v[28:31], v11 offset:{WRED+48}
    s_waitcnt lgkmcnt(2)
    v_pk_add_f32 v[16:17], v[16:17], v[18:19]
    v_pk_add_f32 v[20:21], v[20:21], v[22:23]
    s_waitcnt lgkmcnt(0)
    v_pk_add_f32 v[24:25], v[24:25], v[26:27]
    v_pk_add_f32 v[28:29], v[28:29], v[30:31]
    v_pk_add_f32 v[16:17], v[16:17], v[20:21]
    v_pk_add_f32 v[24:25], v[24:25], v[28:29]
    v_add_f32 v16, v16, v17
    v_add_f32 v24, v24, v25
    v_cvt_pk_bf16_f32 v16, v16, v24
    v_min_u32 v16, -2, v16
    buffer_store_dword v16, v12, {sWS}, s56 offen sc1
L_kdone:
    """)
    stamp(8)
    a("s_branch L_fin")

    a("L_vwave:")
    a(f"""
    v_and_b32 v5, 1, v4
    v_mov_b32 v6, 0xffff
    v_lshlrev_b32 v5, 4, v5
    v_lshlrev_b32 v6, v5, v6
    v_lshrrev_b32 v5, 1, v4
    """)
    for r in range(4):
        a(f"v_cmp_eq_u32 vcc, {r}, v5\ns_nop 1\nv_cndmask_b32 v{20+r}, 0, v6, vcc")
    a("s_cmp_lg_u32 s3, 4\ns_cbranch_scc1 L_notq")
    a(f"""
    v_mov_b32 v8, -1
    v_mov_b32 v9, -1
    v_lshlrev_b32 v5, 3, v0
    s_lshl_b32 s55, s52, 9
    s_add_u32 s55, s55, {QP}
    buffer_store_dwordx2 v[8:9], v5, {sWS}, s55 offen sc1
    v_lshlrev_b32 v6, 2, v0
    s_lshl_b32 s56, s52, 8
    s_add_u32 s56, s56, {OP}
    buffer_store_dword v8, v6, {sWS}, s56 offen sc1
    s_mov_b64 exec, 0xff
    s_lshl_b32 s56, s52, 5
    s_add_u32 s56, s56, {ML}
    buffer_store_dword v8, v6, {sWS}, s56 offen sc1
    s_lshl_b32 s56, s48, 10
    s_lshl_b32 s57, s49, 5
    s_add_u32 s56, s56, s57
    s_add_u32 s56, s56, {YP}
    buffer_store_dword v8, v6, {sWS}, s56 offen sc1
    s_min_u32 s56, s52, 171
    s_lshl_b32 s56, s56, 4
    s_add_u32 s56, s56, {HH}
    s_mov_b64 exec, 0xf
    buffer_store_dword v8, v6, {sWS}, s56 offen sc1
    s_mov_b64 exec, -1
    buffer_load_dwordx4 v[12:15], v2, {sX}, 0 offen
    v_lshlrev_b32 v5, 5, v3
    s_lshl_b32 s56, s51, 7
    buffer_load_dwordx4 v[24:27], v5, {sX}, s56 offen
    buffer_load_dwordx4 v[28:31], v5, {sX}, s56 offen offset:16
    v_lshlrev_b32 v5, 17, v3
    v_lshl_add_u32 v5, v4, 4, v5          ; g*16 rows * 8192 + n*16
    s_lshl_b32 s56, s51, 19
    s_lshl_b32 s57, s50, 8
    s_add_u32 s56, s56, s57
    """)
    for i in range(16):
        a(f"buffer_load_dwordx4 {vr(KR+4*i)}, v5, {sWQ}, s56 offen {wnt}")
        if i != 15: a("s_add_u32 s56, s56, 8192")
    a(f"""
    s_waitcnt vmcnt(19)
    v_mov_b32 v8, 1
    v_mov_b32 v9, s52
    s_mov_b64 exec, 1
    buffer_store_byte v8, v9, {sDBG}, 0 offen sc1
    s_mov_b64 exec, -1
    s_waitcnt vmcnt(17)
    """)
    stamp(0)
    for k in range(4):
        a(f"v_lshlrev_b32 v{32+2*k}, 16, v{12+k}\nv_and_b32 v{33+2*k}, 0xffff0000, v{12+k}")
    a("""
    v_add_f32 v8, v32, v33
    v_add_f32 v9, v34, v35
    v_add_f32 v10, v36, v37
    v_add_f32 v11, v38, v39
    v_add_f32 v8, v8, v9
    v_add_f32 v10, v10, v11
    v_add_f32 v8, v8, v10
    """)
    allreduce("v_add_f32", "v8", "s60")
    a(f"s_nop 1\nv_mov_b32 v8, s60\nv_mul_f32 v8, {f2u(1/512)}, v8")
    for k in range(8): a(f"v_sub_f32 v{32+k}, v{32+k}, v8")
    a("v_mul_f32 v9, v32, v32")
    for k in range(1, 8): a(f"v_fmac_f32 v9, v{32+k}, v{32+k}")
    allreduce("v_add_f32", "v9", "s61")
    a(f"s_nop 1\nv_mov_b32 v9, s61\nv_mul_f32 v9, {f2u(1/512)}, v9")
    rne("v8", "v8"); rne("v9", "v9")
    a(f"v_add_f32 v9, {f2u(1e-5)}, v9"); rne("v9", "v9")
    a("v_sqrt_f32 v9, v9\ns_nop 0"); rne("v9", "v9")
    a("v_rcp_f32 v9, v9")
    for k in range(8):
        a(f"v_lshlrev_b32 v{32+2*k}, 16, v{24+k}\nv_and_b32 v{33+2*k}, 0xffff0000, v{24+k}")
    for k in range(16): a(f"v_sub_f32 v{32+k}, v{32+k}, v8")
    for k in range(16): rne(f"v{32+k}", f"v{32+k}")
    for k in range(16): a(f"v_mul_f32 v{32+k}, v{32+k}, v9")
    for k in range(16): a(f"v_cvt_pk_bf16_f32 v{32+k}, v{32+k}, v{32+k}")
    def diag(n, P, D, acc, cnt_after):
        fr = lambda i: 8 + 4 * (i & 1)
        for r in range(4): a(f"v_and_b32 v{fr(0)+r}, v{P}, v{20+r}")
        for i in range(n):
            if i + 1 < n:
                for r in range(4): a(f"v_and_b32 v{fr(i+1)+r}, v{P+i+1}, v{20+r}")
            else:
                a("s_nop 1")
            a(f"s_waitcnt vmcnt({n-1-i+cnt_after})")
            a(f"v_mfma_f32_16x16x32_bf16 {vr(acc)}, {vr(fr(i))}, {vr(D+4*i)}, {'0' if i == 0 else vr(acc)}")
    diag(16, 32, KR, 16, 1)
    a(f"""
    v_lshlrev_b32 v5, 5, v4
    v_lshl_add_u32 v5, v3, 4, v5          ; (n*8 + 4g')*4
    s_mov_b32 exec_hi, 0
    s_nop 5
    v_min_u32 v16, -2, v16
    v_min_u32 v17, -2, v17
    v_min_u32 v18, -2, v18
    v_min_u32 v19, -2, v19
    buffer_store_dwordx4 v[16:19], v5, {sWS}, s55 offen sc1
    s_mov_b64 exec, -1
    """)
    stamp(1)
    a(f"""
    s_branch L_b1
L_notq:
    v_mov_b32 v8, 0
    v_mov_b32 v9, 0
    v_mov_b32 v10, 0
    v_mov_b32 v11, 0
    ds_write_b128 v8, v[8:11] offset:{CNT}
    s_waitcnt lgkmcnt(0)
L_b1:
    s_barrier
    """)
    for i in range(32):
        a(f"buffer_load_dwordx4 {vr(KR+4*i)}, v2, {sV}, s54 offen {nt}")
        if i != 31: a("s_add_u32 s54, s54, 4096")
    stamp(2)
    a(f"""
    s_lshl_b32 s55, s53, 9
    v_lshlrev_b32 v5, 7, v3
    v_add_u32 v5, s55, v5
    s_lshl_b32 s55, s53, 2
    v_mov_b32 v6, s55
    s_barrier
    """)
    stamp(3)
    for k in range(8): a(f"ds_read_b128 {vr(32+4*k)}, v5 offset:{P_LDS+16*k}")
    a(f"ds_read_b32 v7, v6 offset:{F_LDS}")
    a(f"""
    v_lshlrev_b32 v5, 5, v4
    v_lshl_add_u32 v5, v3, 4, v5
    s_lshl_b32 s55, s53, 9
    v_add_u32 v5, s55, v5
    v_mov_b32 v24, 0
    v_mov_b32 v25, 1
    v_lshlrev_b32 v26, 3, v0
    v_lshlrev_b32 v27, 2, v0
    s_lshl_b32 s56, s52, 8
    s_add_u32 s56, s56, {OP}
    s_waitcnt lgkmcnt(0)
    """)
    diag(32, 32, KR, 16, 0)
    stamp(4)
    a(f"""
    s_mov_b32 exec_hi, 0
    s_nop 6
    v_mul_f32 v16, v7, v16
    v_mul_f32 v17, v7, v17
    v_mul_f32 v18, v7, v18
    v_mul_f32 v19, v7, v19
    ds_write_b128 v5, v[16:19] offset:{ORED}
    s_mov_b64 exec, 1
    ds_add_rtn_u32 v13, v24, v25 offset:{CNT}
    s_waitcnt lgkmcnt(0)
    v_readfirstlane_b32 s57, v13
    s_mov_b64 exec, -1
    s_nop 2
    s_cmp_lt_u32 s57, 3
    s_cbranch_scc1 L_onotlast
    ds_read_b64 v[8:9], v26 offset:{ORED}
    ds_read_b64 v[10:11], v26 offset:{ORED+512}
    ds_read_b64 v[12:13], v26 offset:{ORED+1024}
    ds_read_b64 v[14:15], v26 offset:{ORED+1536}
    s_waitcnt lgkmcnt(2)
    v_pk_add_f32 v[8:9], v[8:9], v[10:11]
    s_waitcnt lgkmcnt(0)
    v_pk_add_f32 v[12:13], v[12:13], v[14:15]
    v_pk_add_f32 v[8:9], v[8:9], v[12:13]
    v_cvt_pk_bf16_f32 v8, v8, v9
    v_min_u32 v8, -2, v8
    buffer_store_dword v8, v27, {sWS}, s56 offen sc1
L_onotlast:
    """)
    stamp(5)
    a(f"""
    s_cmp_ge_u32 s49, 28
    s_cbranch_scc1 L_dstage
    s_cmp_lt_u32 s48, 3
    s_cselect_b32 s55, 24, 20
    s_cmp_ge_u32 s49, s55
    s_cbranch_scc1 L_fin
    s_mul_i32 s55, s48, 24
    s_mul_i32 s56, s48, 20
    s_add_u32 s56, s56, 12
    s_cmp_lt_u32 s48, 3
    s_cselect_b32 s55, s55, s56
    s_add_u32 s51, s55, s49               ; G unit u
    ; ---------------- G stage ----------------
    s_mov_b32 s55, 2752
    v_mul_lo_u32 v5, s55, v0
    s_mul_i32 s56, s53, {128*2752}
    s_lshl_b32 s57, s51, 4
    s_add_u32 s56, s56, s57
    s_lshl_b32 s57, s53, 12
    s_add_u32 s57, s57, {GW}
    s_mov_b32 m0, s57
    s_add_u32 s58, s56, {64*2752}
    buffer_load_dwordx4 v5, {sWG}, s56 offen {wnt} lds
    s_add_u32 m0, m0, 1024
    s_nop 0
    buffer_load_dwordx4 v5, {sWG}, s58 offen {wnt} lds
    s_add_u32 m0, m0, 1024
    s_nop 0
    buffer_load_dwordx4 v5, {sWU}, s56 offen {wnt} lds
    s_add_u32 m0, m0, 1024
    s_nop 0
    buffer_load_dwordx4 v5, {sWU}, s58 offen {wnt} lds
    v_and_b32 v6, 1, v3
    v_lshlrev_b32 v5, 4, v4
    v_lshl_add_u32 v5, v6, 3, v5          ; n*16 + g'*8
    s_lshl_b32 s56, s53, 8
    buffer_load_dwordx2 v[8:9], v5, {sX}, s56 offen
    v_add_u32 v28, s56, v5
    v_lshl_add_u32 v29, v3, 4, s56
    v_lshrrev_b32 v6, 2, v4
    v_lshl_add_u32 v6, v3, 3, v6
    v_lshlrev_b32 v6, 4, v6               ; row*16
    v_and_b32 v7, 1, v0
    v_lshl_add_u32 v6, v7, 3, v6
    v_bfe_u32 v7, v0, 1, 1
    v_lshl_add_u32 v6, v7, 11, v6
    v_add_u32 v6, s57, v6
    v_and_b32 v32, 0x3f803f80, v20
    v_and_b32 v33, 0x3f803f80, v21
    v_and_b32 v34, 0x3f803f80, v22
    v_and_b32 v35, 0x3f803f80, v23
    v_mov_b32 v36, 0x3f803f80
    v_mov_b32 v37, 0x3f803f80
    v_mov_b32 v38, 0x3f803f80
    v_mov_b32 v39, 0x3f803f80
    v_lshlrev_b32 v5, 10, v3
    v_lshl_add_u32 v5, v4, 4, v5
    s_add_u32 s56, s56, {YP}
    s_add_u32 s58, s56, 4096
    v_lshlrev_b32 v30, 5, v4
    s_lshl_b32 s59, s53, 2
    v_add_u32 v30, s59, v30
    s_lshl_b32 s59, s53, 3
    v_mov_b32 v31, s59
    s_waitcnt vmcnt(0)
    """)
    for ks in range(4):
        a(f"ds_read_b64_tr_b16 {vr(40+4*ks,2)}, v6 offset:{ks*512}")
        a(f"ds_read_b64_tr_b16 {vr(42+4*ks,2)}, v6 offset:{ks*512+64}")
    a("""
    v_lshlrev_b32 v12, 16, v8
    v_and_b32 v13, 0xffff0000, v8
    v_lshlrev_b32 v14, 16, v9
    v_and_b32 v15, 0xffff0000, v9
    s_waitcnt lgkmcnt(0)
    """)
    for ks in range(4):
        a(f"v_mfma_f32_16x16x32_bf16 v[16:19], v[36:39], {vr(40+4*ks)}, {'0' if ks == 0 else 'v[16:19]'}")
    a(f"""
    s_mov_b64 exec, 0xffff
    s_nop 6
    ds_write_b32 v30, v16 offset:{GRED+16}
    s_mov_b64 exec, -1
    """)
    stamp(6)
    poll([f"buffer_load_dwordx4 v[56:59], v5, {sWS}, s56 offen sc1", f"buffer_load_dwordx4 v[60:63], v5, {sWS}, s58 offen sc1"],
         [f"v{56+k}" for k in range(8)], "v7")
    stamp(7)
    a(f"""
    v_mfma_f32_16x16x32_bf16 v[12:15], v[32:35], v[56:59], v[12:15]
    v_mfma_f32_16x16x32_bf16 v[12:15], v[32:35], v[60:63], v[12:15]
    s_mov_b32 exec_hi, 0
    s_nop 6
    v_cvt_pk_bf16_f32 v8, v12, v13
    v_cvt_pk_bf16_f32 v9, v14, v15
    ds_write_b64 v28, v[8:9] offset:{HL}
    s_mov_b64 exec, -1
    """)
    for ks in range(4): a(f"ds_read_b128 {vr(56+4*ks)}, v29 offset:{HL+64*ks}")
    a("""
    v_lshlrev_b32 v12, 16, v8
    v_and_b32 v13, 0xffff0000, v8
    v_lshlrev_b32 v14, 16, v9
    v_and_b32 v15, 0xffff0000, v9
    v_add_f32 v10, v12, v13
    v_mul_f32 v11, v12, v12
    v_add_f32 v10, v10, v14
    v_fmac_f32 v11, v13, v13
    v_add_f32 v10, v10, v15
    v_fmac_f32 v11, v14, v14
    v_fmac_f32 v11, v15, v15
    """)
    for r in (8, 4, 2, 1):
        a(f"s_nop 0\nv_add_f32_dpp v10, v10, v10 row_ror:{r} row_mask:0xf bank_mask:0xf\nv_add_f32_dpp v11, v11, v11 row_ror:{r} row_mask:0xf bank_mask:0xf")
    a("s_nop 0\nv_add_f32_dpp v10, v10, v10 row_bcast:15 row_mask:0xa bank_mask:0xf\nv_add_f32_dpp v11, v11, v11 row_bcast:15 row_mask:0xa bank_mask:0xf")
    a("s_waitcnt lgkmcnt(0)")
    for ks in range(4):
        a(f"v_mfma_f32_16x16x32_bf16 v[16:19], {vr(56+4*ks)}, {vr(40+4*ks)}, {'0' if ks == 0 else 'v[16:19]'}")
    a(f"""
    s_mov_b64 exec, 0x10000
    ds_write_b64 v31, v[10:11] offset:{STAT}
    s_mov_b64 exec, 0xffff
    s_nop 5
    ds_write_b32 v30, v16 offset:{GRED}
    s_mov_b64 exec, 1
    ds_add_rtn_u32 v13, v24, v25 offset:{CNT+8}
    s_mov_b64 exec, 0xffff
    v_lshlrev_b32 v30, 5, v4
    s_waitcnt lgkmcnt(0)
    v_readfirstlane_b32 s57, v13
    s_nop 3
    s_cmp_lt_u32 s57, 3
    s_cbranch_scc1 L_fin
    ds_read_b128 v[8:11], v24 offset:{STAT}
    ds_read_b128 v[12:15], v24 offset:{STAT+16}
    ds_read_b128 v[16:19], v30 offset:{GRED}
    ds_read_b128 v[20:23], v30 offset:{GRED+16}
    s_lshl_b32 s56, s51, 4
    s_add_u32 s56, s56, {HH}
    v_lshlrev_b32 v5, 1, v0
    s_waitcnt lgkmcnt(2)
    v_pk_add_f32 v[8:9], v[8:9], v[10:11]
    v_pk_add_f32 v[12:13], v[12:13], v[14:15]
    v_pk_add_f32 v[8:9], v[8:9], v[12:13]
    v_mul_f32 v8, {f2u(1/512)}, v8
    v_mul_f32 v9, {f2u(1/512)}, v9
    v_fma_f32 v9, -v8, v8, v9
    v_max_f32 v9, 0, v9
    """)
    rne("v9", "v9"); a(f"v_add_f32 v9, {f2u(1e-5)}, v9"); rne("v9", "v9")
    a("v_sqrt_f32 v9, v9"); rne("v8", "v8"); rne("v9", "v9")
    a(f"""
    v_rcp_f32 v9, v9
    s_waitcnt lgkmcnt(0)
    v_pk_add_f32 v[16:17], v[16:17], v[18:19]
    v_pk_add_f32 v[20:21], v[20:21], v[22:23]
    v_add_f32 v16, v16, v17
    v_add_f32 v20, v20, v21
    v_fma_f32 v16, -v8, v20, v16
    v_mul_f32 v16, v16, v9
    """)
    rne("v16", "v16")
    a(f"""
    v_mul_f32 v17, {f2u(-LOG2E)}, v16
    v_exp_f32 v17, v17
    s_nop 0
    v_mov_b32_dpp v18, v16 row_ror:8 row_mask:0xf bank_mask:0xf
    v_add_f32 v17, 1.0, v17
    v_rcp_f32 v17, v17
    s_nop 0
    """)
    rne("v17", "v17")
    a(f"""
    v_mul_f32 v17, v17, v18
    s_nop 1
    v_mov_b32_dpp v18, v17 quad_perm:[1,0,3,2] row_mask:0xf bank_mask:0xf
    v_cvt_pk_bf16_f32 v17, v17, v18
    v_min_u32 v17, -2, v17
    s_mov_b64 exec, 0x55
    buffer_store_dword v17, v5, {sWS}, s56 offen sc1
    """)
    stamp(8)
    a(f"""
    s_branch L_fin
    ; ---------------- D stage ----------------
L_dstage:
    s_lshl_b32 s51, s48, 2
    s_add_u32 s51, s51, s49
    s_sub_u32 s51, s51, 28                ; D unit v
    v_lshrrev_b32 v5, 1, v0
    v_lshlrev_b32 v5, 10, v5
    v_and_b32 v6, 1, v0
    v_lshl_add_u32 v5, v6, 4, v5
    s_mul_i32 s56, s53, {352*1024}
    s_lshl_b32 s57, s51, 5
    s_add_u32 s56, s56, s57
    s_mul_i32 s57, s53, 11264
    s_add_u32 s57, s57, {GW}
    s_mov_b32 m0, s57
    s_nop 0
    """)
    for i in range(11):
        if i == 10: a("s_cmp_eq_u32 s53, 3\ns_cbranch_scc1 L_dskip")
        a(f"buffer_load_dwordx4 v5, {sWD}, s56 offen {wnt} lds")
        if i != 10: a("s_add_u32 s56, s56, 32768\ns_add_u32 m0, m0, 1024\ns_nop 0")
    a(f"""
L_dskip:
    v_and_b32 v6, 7, v0
    v_lshlrev_b32 v6, 2, v6
    s_lshl_b32 s58, s51, 5
    buffer_load_dword v8, v6, {sX}, s58 offen
    v_lshrrev_b32 v7, 3, v0
    v_lshl_add_u32 v26, v7, 10, v6
    s_add_u32 s59, s58, {YP}
    v_lshrrev_b32 v6, 2, v4
    v_lshl_add_u32 v6, v3, 3, v6
    v_lshlrev_b32 v6, 5, v6
    v_and_b32 v7, 3, v0
    v_lshl_add_u32 v6, v7, 3, v6
    v_add_u32 v6, s57, v6
    s_mul_i32 s57, s53, 704
    v_add_u32 v28, s57, v2
    v_lshl_add_u32 v29, v3, 4, s57
    s_add_u32 s57, s57, {HH}
    v_lshlrev_b32 v30, 4, v4
    s_lshl_b32 s56, s53, 2
    v_add_u32 v30, s56, v30
    v_mov_b32 v12, 0
    v_mov_b32 v13, 0
    v_mov_b32 v14, 0
    v_mov_b32 v15, 0
    s_waitcnt vmcnt(0)
    """)
    for ks in range(11):
        a(f"ds_read_b64_tr_b16 {vr(KR+4*ks,2)}, v6 offset:{ks*1024}")
        a(f"ds_read_b64_tr_b16 {vr(KR+2+4*ks,2)}, v6 offset:{ks*1024+128}")
    a("s_waitcnt lgkmcnt(0)\ns_cmp_lg_u32 s53, 3\ns_cbranch_scc1 L_dnz")
    for k in range(4): a(f"v_mov_b32 v{KR+40+k}, 0")
    a("L_dnz:")
    stamp(6)
    poll([f"buffer_load_dword v9, v26, {sWS}, s59 offen sc1"], ["v9"], "v7")
    a("""
    v_lshlrev_b32 v10, 16, v9
    v_and_b32 v11, 0xffff0000, v9
    s_nop 0
    v_add_f32_dpp v10, v10, v10 row_ror:8 row_mask:0xf bank_mask:0xf
    v_add_f32_dpp v11, v11, v11 row_ror:8 row_mask:0xf bank_mask:0xf
    v_mov_b32 v16, v10
    v_mov_b32 v17, v11
    s_nop 1
    v_permlane16_swap_b32 v16, v10
    v_permlane16_swap_b32 v17, v11
    v_add_f32 v10, v10, v16
    v_add_f32 v11, v11, v17
    v_mov_b32 v16, v10
    v_mov_b32 v17, v11
    s_nop 1
    v_permlane32_swap_b32 v16, v10
    v_permlane32_swap_b32 v17, v11
    v_add_f32 v10, v10, v16
    v_add_f32 v11, v11, v17
    v_lshlrev_b32 v16, 16, v8
    v_and_b32 v17, 0xffff0000, v8
    v_add_f32 v10, v10, v16
    v_add_f32 v11, v11, v17
    """)
    rne("v10", "v10"); rne("v11", "v11")
    a("""
    s_mov_b32 exec_hi, 0xfff
    s_cmp_lg_u32 s53, 3
    s_cbranch_scc1 L_dx
    s_mov_b32 exec_hi, 0xff
L_dx:
    """)
    stamp(7)
    poll([f"buffer_load_dwordx4 v[12:15], v2, {sWS}, s57 offen sc1"], ["v12", "v13", "v14", "v15"], "v7")
    stamp(8)
    a(f"""
    s_mov_b32 exec_hi, 0xfff
    ds_write_b128 v28, v[12:15] offset:{HHL}
    s_mov_b64 exec, -1
    """)
    for ks in range(11): a(f"ds_read_b128 {vr(32+4*ks)}, v29 offset:{HHL+64*ks}")
    for ks in range(11):
        a(f"s_waitcnt lgkmcnt({10-ks})")
        a(f"v_mfma_f32_16x16x32_bf16 v[16:19], {vr(32+4*ks)}, {vr(KR+4*ks)}, {'0' if ks == 0 else 'v[16:19]'}")
    a(f"""
    s_mov_b64 exec, 0xffff
    v_lshlrev_b32 v31, 5, v0
    v_lshlrev_b32 v27, 2, v0
    s_nop 4
    ds_write_b32 v30, v16 offset:{DRED}
    s_mov_b64 exec, 1
    ds_add_rtn_u32 v13, v24, v25 offset:{CNT+8}
    s_waitcnt lgkmcnt(0)
    v_readfirstlane_b32 s57, v13
    s_nop 3
    s_cmp_lt_u32 s57, 3
    s_cbranch_scc1 L_fin
    s_mov_b64 exec, 0xff
    ds_read_b128 v[16:19], v31 offset:{DRED}
    ds_read_b128 v[20:23], v31 offset:{DRED+16}
    s_waitcnt lgkmcnt(0)
    v_pk_add_f32 v[16:17], v[16:17], v[18:19]
    v_pk_add_f32 v[20:21], v[20:21], v[22:23]
    v_add_f32 v16, v16, v17
    v_add_f32 v20, v20, v21
    v_cvt_pk_bf16_f32 v16, v16, v20
    v_lshlrev_b32 v17, 16, v16
    v_and_b32 v16, 0xffff0000, v16
    v_add_f32 v17, v17, v10
    v_add_f32 v16, v16, v11
    v_cvt_pk_bf16_f32 v16, v17, v16
    buffer_store_dword v16, v27, {sOUT}, s58 offen
    """)
    stamp(9)
    a("L_fin:")
    if stamps:
        a(f"""
    s_memrealtime s[94:95]
    s_getreg_b32 s93, hwreg(HW_REG_XCC_ID)
    s_waitcnt lgkmcnt(0)
    s_mov_b64 exec, 1
    s_lshl_b32 s55, s2, 3
    s_add_u32 s55, s55, s3
    s_lshl_b32 s55, s55, 6
    s_add_u32 s55, s55, {STAMP}
    v_mov_b32 v5, 0
    """)
        src = ["s96", "s94", "s93", "s52"] + [f"s{64+2*k}" for k in range(12)]
        for q in range(4):
            for k in range(4): a(f"v_mov_b32 v{8+k}, {src[4*q+k]}")
            a(f"buffer_store_dwordx4 v[8:11], v5, {sWS}, s55 offen offset:{16*q}\ns_nop 1")
    a("L_end:\ns_endpgm")
    return wrap(a.text(), 256, 512, LDS_SIZE, 256, sgpr=100)

if __name__ == "__main__":
    open("k1.s", "w").write(make())
    open("k1_st.s", "w").write(make(stamps=True))
    open("k1_def.s", "w").write(make(nt="", wnt=""))
```
